```python
import torch

def _softmax(x, axis=-1):
    return torch.softmax(x, dim=axis)

def _gelu(x):
    return torch.nn.functional.gelu(x, approximate='tanh')

def _silu(x):
    return torch.nn.functional.silu(x)

def _sigmoid(x):
    return torch.sigmoid(x)

def _layernorm(x, axis=-1, eps=1e-05):
    m = x.mean(dim=axis, keepdim=True)
    v = x.var(dim=axis, keepdim=True, unbiased=False)
    return (x - m) / torch.sqrt(v + eps)

def _scatter_add(tgt, idx, src, axis=0):
    return tgt.clone().index_add_(axis, idx, src)

def _segment_sum(src, seg, n):
    out = torch.zeros((n,) + src.shape[1:], dtype=src.dtype)
    return out.index_add_(0, seg, src)

def _pad(x, pw):
    flat = tuple((v for pair in reversed(pw) for v in pair))
    return torch.nn.functional.pad(x, flat)
kernel_name = 'standalone__tree_speculative_verify_tree_attention_over_candidate_token_tree__sampling'

def setup_inputs():

    _w = lambda a: (lambda t: t.to(torch.bfloat16) if t.is_floating_point() else t)(torch.as_tensor(a))
    B, Hq, Hkv, T, C, D = (8, 16, 8, 32, 2048, 256)
    tree_mask = torch.zeros((B, T, T), dtype=float)
    for b in range(B):
        parent = torch.zeros(T, dtype=torch.int64)
        for i in range(1, T):
            parent[i] = int(torch.randint(0, i, (1,)).item())
        for i in range(T):
            j = i
            tree_mask[b, i, j] = 1.0
            while j > 0:
                j = parent[j]
                tree_mask[b, i, j] = 1.0
    return {'q': _w((lambda *s: torch.randn(*s, dtype=torch.bfloat16) * 0.8)(B, Hq, T, D)), 'k_cache': _w((lambda *s: torch.randn(*s, dtype=torch.bfloat16) * 0.8)(B, Hkv, C, D)), 'v_cache': _w((lambda *s: torch.randn(*s, dtype=torch.bfloat16) * 0.05)(B, Hkv, C, D)), 'k_tree': _w((lambda *s: torch.randn(*s, dtype=torch.bfloat16) * 0.8)(B, Hkv, T, D)), 'v_tree': _w((lambda *s: torch.randn(*s, dtype=torch.bfloat16) * 0.05)(B, Hkv, T, D)), 'tree_mask': _w(tree_mask)}

def reference(q, k_cache, v_cache, k_tree, v_tree, tree_mask):
    B, Hq, T, D = q.shape
    Hkv, C = (k_cache.shape[1], k_cache.shape[2])
    rep = Hq // Hkv
    kc = (lambda x, n, axis: torch.repeat_interleave(x, n, dim=axis))(k_cache, rep, axis=1)
    vc = (lambda x, n, axis: torch.repeat_interleave(x, n, dim=axis))(v_cache, rep, axis=1)
    kt = (lambda x, n, axis: torch.repeat_interleave(x, n, dim=axis))(k_tree, rep, axis=1)
    vt = (lambda x, n, axis: torch.repeat_interleave(x, n, dim=axis))(v_tree, rep, axis=1)
    k = torch.concatenate([kc, kt], axis=2)
    v = torch.concatenate([vc, vt], axis=2)
    scale = D ** (-0.5)
    scores = torch.einsum('bhqd,bhkd->bhqk', q, k) * scale
    ctx_mask = torch.ones((B, 1, T, C), dtype=scores.dtype)
    tm = tree_mask[:, None, :, :].clone()
    full_mask = torch.concatenate([ctx_mask, tm], axis=-1)
    scores = scores + (1.0 - full_mask) * -1000000000.0
    p = _softmax(scores, axis=-1)
    return torch.einsum('bhqk,bhkd->bhqd', p, v)
```

```python
import struct, sys
KN = "standalone__tree_speculative_verify_tree_attention_over_candidate_token_tree__sampling"
def f32hex(x): return "0x%08x" % struct.unpack("<I", struct.pack("<f", x))[0]
import math
CEXP = 0.0625 * math.log2(math.e)

def gen(R=5, nt=True, spin_limit=1 << 20):
    L = []
    def A(s): L.append("    " + s)
    def LB(s): L.append(s + ":")
    RING = 0
    RED = 4 * R * 4096
    TREEK = RED + 32768
    TREEV = RED + 65536
    STATS = TREEV + 4096
    LDS_TOTAL = STATS + 4096
    assert LDS_TOTAL <= 163840
    ntf = " nt" if nt else ""
    hdr = open("cdna_kernels/" + KN + ".s.ref").read().split("\n")
    for l in hdr:
        if l.startswith(";") and "@launch" not in l: L.append(l)
        elif l.startswith(";"): pass
        else: break
    L.append(f"; @launch grid=(256,1,1) block=(512,1,1) lds={LDS_TOTAL}")
    L.append('.amdgcn_target "amdgcn-amd-amdhsa--gfx950"')
    L.append(".text")
    L.append(f".globl {KN}_kernel")
    L.append(".p2align 8")
    L.append(f".type {KN}_kernel,@function")
    LB(f"{KN}_kernel")
    A("s_cmp_ge_u32 s2, 256")
    A("s_cbranch_scc1 L_end")
    A("s_load_dwordx16 s[4:19], s[0:1], 0")
    A("s_load_dwordx2 s[20:21], s[0:1], 64")
    A("v_lshrrev_b32 v1, 6, v0")
    A("v_and_b32 v0, 63, v0")
    A("v_readfirstlane_b32 s60, v1")
    A("s_lshr_b32 s63, s2, 2")
    A("s_and_b32 s62, s2, 3")
    A("s_and_b32 s61, s60, 3")
    A("v_lshrrev_b32 v4, 3, v0")
    A("v_lshlrev_b32 v4, 9, v4")
    A("v_lshrrev_b32 v5, 4, v0")
    A("v_and_b32 v6, 7, v0")
    A("v_xor_b32 v7, v6, v5")
    A("v_lshl_add_u32 v1, v7, 4, v4")
    A("v_xor_b32 v7, 4, v7")
    A("v_lshl_add_u32 v2, v7, 4, v4")
    A("v_and_b32 v7, 1, v5")
    A("v_lshlrev_b32 v7, 2, v7")
    A("v_xor_b32 v7, v6, v7")
    A("v_lshl_add_u32 v3, v7, 4, v4")
    A("s_lshl_b32 s22, s2, 18")
    A("s_lshl_b32 s23, s61, 16")
    A("s_add_u32 s22, s22, s23")
    A("s_lshl_b32 s70, s63, 15")
    A("s_lshl_b32 s71, s63, 14")
    A("s_lshl_b32 s72, s62, 12")
    A("s_add_u32 s71, s71, s72")
    A("s_lshr_b32 s73, s63, 3")
    A("s_lshl_b32 s73, s73, 11")
    A(f"s_mul_i32 s64, s61, {R*4096}")
    for t in range(4):
        A(f"s_add_u32 s{66+t}, s62, {1+t}"); A(f"s_and_b32 s{66+t}, s{66+t}, 3"); A(f"s_lshl_b32 s{66+t}, s{66+t}, 7")
    A("s_waitcnt lgkmcnt(0)")
    def srd(d, base, off, nbytes):
        if off is None:
            A(f"s_mov_b32 s{d}, s{base}"); A(f"s_and_b32 s{d+1}, s{base+1}, 0xffff")
        else:
            A(f"s_add_u32 s{d}, s{base}, s{off}"); A(f"s_addc_u32 s{d+1}, s{base+1}, 0"); A(f"s_and_b32 s{d+1}, s{d+1}, 0xffff")
        A(f"s_mov_b32 s{d+2}, {nbytes}"); A(f"s_mov_b32 s{d+3}, 0x20000")
    srd(24, 6, 22, 65536)
    srd(28, 8, 22, 65536)
    srd(32, 14, 73, 2048)
    srd(36, 4, 70, 32768)
    srd(40, 10, 71, 4096)
    srd(44, 12, 71, 4096)
    srd(48, 16, 70, 32768)
    srd(52, 18, None, 256)
    srd(56, 20, None, 268435456)
    A("s_cmp_ge_u32 s60, 4")
    A("s_cbranch_scc1 L_helper")

    units = [("K", kt, dq) for kt in range(4) for dq in range(4)] + [("V", kt, t) for t in range(4) for kt in range(4)]
    NU = len(units)
    def issue(u):
        kind, kt, x = units[u]
        slot = u % R
        for n in range(4):
            A(f"s_add_u32 m0, s64, {slot*4096 + n*1024}")
            if kind == "K":
                A(f"s_mov_b32 s65, {kt*16384 + n*4096 + x*128}")
                A(f"buffer_load_dwordx4 v{1 + (n&1)}, s[24:27], s65 offen{ntf} lds")
            else:
                A(f"s_add_u32 s65, s{66+x}, {kt*16384 + n*4096}")
                A(f"buffer_load_dwordx4 v3, s[28:31], s65 offen{ntf} lds")
    A("v_and_b32 v8, 31, v0")
    A("v_lshlrev_b32 v9, 6, v8")
    A("s_lshl_b32 s74, s62, 4"); A("s_lshl_b32 s75, s61, 2"); A("s_add_u32 s74, s74, s75")
    A("buffer_load_dword v19, v9, s[32:35], s74 offen")
    for u in range(R): issue(u)
    A("v_lshrrev_b32 v9, 5, v0")
    A("v_lshrrev_b32 v10, 1, v8"); A("v_and_b32 v10, 7, v10")
    A("v_xor_b32 v10, v10, v9")
    A("v_lshlrev_b32 v11, 7, v8")
    for sp in range(4):
        A(f"v_xor_b32 v30, {2*sp}, v10")
        A(f"v_lshl_add_u32 v30, v30, 4, v11")
        A(f"v_add_u32 v{4+sp}, s64, v30")
        A(f"v_add_u32 v{168+sp}, {RED}, v30")
    A("v_and_b32 v30, 1, v8"); A("v_lshlrev_b32 v30, 9, v30"); A("v_lshl_add_u32 v30, v9, 4, v30")
    A("s_lshl_b32 s75, s61, 10")
    A(f"s_add_u32 s76, s75, {TREEK}")
    A("v_add_u32 v14, s76, v30")
    A("v_lshrrev_b32 v30, 2, v0"); A("v_and_b32 v30, 3, v30")
    A("v_lshl_add_u32 v31, v9, 2, v30")
    A("v_lshlrev_b32 v31, 7, v31")
    A("v_lshrrev_b32 v12, 4, v0"); A("v_and_b32 v12, 1, v12"); A("v_lshlrev_b32 v12, 5, v12")
    A("v_and_b32 v13, 3, v0"); A("v_lshl_add_u32 v12, v13, 3, v12")
    A("v_lshrrev_b32 v13, 1, v30"); A("v_lshlrev_b32 v13, 6, v13")
    A("v_add_u32 v31, v31, v12")
    A("v_add_u32 v31, s64, v31")
    A("v_and_b32 v15, 1, v30"); A("v_lshl_add_u32 v15, v15, 9, v12")
    A(f"s_add_u32 s76, s75, {TREEV}")
    A("v_add_u32 v15, s76, v15")
    A("v_xor_b32 v16, 64, v13")
    A("v_add_u32 v12, v31, v13")
    A("v_add_u32 v13, v31, v16")
    for sp in range(4): A(f"v_mov_b32 v{8+sp}, v{168+sp}")
    A("s_lshl_b32 s76, s61, 14"); A(f"s_add_u32 s76, s76, {RED}")
    A("v_lshlrev_b32 v17, 4, v0"); A("v_add_u32 v17, s76, v17")
    A("s_lshl_b32 s76, s61, 10"); A(f"s_add_u32 s76, s76, {STATS}")
    A("v_lshlrev_b32 v18, 3, v0"); A("v_add_u32 v18, s76, v18")
    for i in range(8): A(f"v_mov_b32 v{160+i}, 0")
    A(f"s_mov_b32 s77, {f32hex(CEXP)}")
    A("s_barrier")
    SB = 32
    def S(kt, qt): return SB + (kt*2 + qt)*16
    def KF(sp): return 4*sp
    def QF(qt, sp): return 16 + (qt*4 + sp)*4
    for dq in range(4):
        for sp in range(4):
            for qt in range(2):
                A(f"ds_read_b128 a[{QF(qt,sp)}:{QF(qt,sp)+3}], v{8+sp} offset:{(qt*4+dq)*4096}")
        for sp in range(4):
            A(f"ds_read_b128 a[{KF(sp)}:{KF(sp)+3}], v14 offset:{dq*128 + sp*32}")
        for sp in range(4):
            A(f"s_waitcnt lgkmcnt({3-sp})")
            for qt in range(2):
                d = S(3, qt)
                c = "0" if (dq == 0 and sp == 0) else f"v[{d}:{d+15}]"
                A(f"v_mfma_f32_32x32x16_bf16 v[{d}:{d+15}], a[{KF(sp)}:{KF(sp)+3}], a[{QF(qt,sp)}:{QF(qt,sp)+3}], {c}")
    A(f"s_waitcnt vmcnt({4*R})")
    A("v_lshlrev_b32 v20, 16, v19")
    A("v_and_b32 v21, 0xffff0000, v19")
    A("v_sub_f32 v20, 1.0, v20"); A("v_sub_f32 v21, 1.0, v21")
    A(f"v_mul_f32 v20, {f32hex(-1.6e10)}, v20"); A(f"v_mul_f32 v21, {f32hex(-1.6e10)}, v21")
    A("v_mov_b32 v30, 0xff800000")
    A("v_cmp_gt_u32 vcc, 32, v0")
    A("s_nop 1")
    A("v_cndmask_b32 v20, v30, v20, vcc"); A("v_cndmask_b32 v21, v30, v21, vcc")
    A("s_nop 7")
    for qt in range(2):
        A(f"v_add_f32 v{22+2*qt}, v{S(3,qt)}, v20")
        A(f"v_add_f32 v{23+2*qt}, v{S(3,qt)+1}, v21")
    A("s_nop 1")
    def vm_after(u): return 4 * min(R - 1, NU - 1 - u)
    for u in range(16):
        _, kt, dq = units[u]
        slot = u % R
        for sp in range(4):
            for qt in range(2):
                A(f"ds_read_b128 a[{QF(qt,sp)}:{QF(qt,sp)+3}], v{8+sp} offset:{(qt*4+dq)*4096}")
        A(f"s_waitcnt vmcnt({vm_after(u)})")
        for sp in range(4):
            A(f"ds_read_b128 a[{KF(sp)}:{KF(sp)+3}], v{4+sp} offset:{slot*4096}")
        for sp in range(4):
            A(f"s_waitcnt lgkmcnt({3-sp})")
            if sp == 3 and u + R < NU: issue(u + R)
            for qt in range(2):
                d = S(kt, qt)
                c = "0" if (dq == 0 and sp == 0) else f"v[{d}:{d+15}]"
                A(f"v_mfma_f32_32x32x16_bf16 v[{d}:{d+15}], a[{KF(sp)}:{KF(sp)+3}], a[{QF(qt,sp)}:{QF(qt,sp)+3}], {c}")
    A("s_nop 7"); A("s_nop 3")
    for qt in range(2):
        m = 26 + qt
        regs = [S(kt, qt) + i for kt in range(4) for i in range(16)]
        A(f"v_max_f32 v{m}, v{22+2*qt}, v{23+2*qt}")
        A(f"v_max_f32 v30, v{regs[0]}, v{regs[1]}")
        rest = regs[2:]
        tgt = [m, 30]
        k = 0
        while rest:
            a, b = rest[0], rest[1]; rest = rest[2:]
            t = tgt[k & 1]; k += 1
            A(f"v_max3_f32 v{t}, v{t}, v{a}, v{b}")
        A(f"v_max_f32 v{m}, v{m}, v30")
        A(f"v_mov_b32 v30, v{m}")
        A("s_nop 1")
        A(f"v_permlane32_swap_b32 v30, v{m}")
        A("s_nop 1")
        A(f"v_max_f32 v{m}, v{m}, v30")
        A(f"v_mov_b32 v{172+2*qt}, v{m}")
        A(f"v_mul_f32 v{m}, s77, v{m}")
    for qt in range(2):
        m = 26 + qt
        A(f"v_fma_f32 v{22+2*qt}, v{22+2*qt}, s77, -v{m}")
        A(f"v_fma_f32 v{23+2*qt}, v{23+2*qt}, s77, -v{m}")
        A(f"v_exp_f32 v{22+2*qt}, v{22+2*qt}")
        A(f"v_exp_f32 v{23+2*qt}, v{23+2*qt}")
        A("s_nop 0")
        A(f"v_add_f32 v{28+qt}, v{22+2*qt}, v{23+2*qt}")
        A(f"v_cvt_pk_bf16_f32 v{160+4*qt}, v{22+2*qt}, v{23+2*qt}")
    def softmax_tile(kt):
        for qt in range(2):
            b = S(kt, qt); m = 26 + qt
            for i in range(16): A(f"v_fma_f32 v{b+i}, v{b+i}, s77, -v{m}")
            for i in range(16): A(f"v_exp_f32 v{b+i}, v{b+i}")
            A(f"v_add_f32 v30, v{b}, v{b+1}")
            A(f"v_add_f32 v31, v{b+2}, v{b+3}")
            for i in range(4, 16, 2):
                A(f"v_add_f32 v30, v30, v{b+i}")
                A(f"v_add_f32 v31, v31, v{b+i+1}")
            for r in range(8): A(f"v_cvt_pk_bf16_f32 v{b+r}, v{b+2*r}, v{b+2*r+1}")
            A(f"v_add_f32 v30, v30, v31")
            A(f"v_add_f32 v{28+qt}, v{28+qt}, v30")
    def O(dt, qt): return (dt*2 + qt)*16
    def VF(kc, dt): return 64 + (kc*2 + dt)*4
    for t in range(4):
        A(f"v_add_u32 v30, s{66+t}, v15")
        for dt in range(2):
            A(f"ds_read_b64_tr_b16 a[{VF(0,dt)}:{VF(0,dt)+1}], v30 offset:{dt*64}")
            A(f"ds_read_b64_tr_b16 a[{VF(0,dt)+2}:{VF(0,dt)+3}], v30 offset:{dt*64}")
        for dt in range(2):
            A(f"s_waitcnt lgkmcnt({2-2*dt})")
            for qt in range(2):
                o = O(dt, qt)
                A(f"v_mfma_f32_32x32x16_bf16 a[{o}:{o+15}], a[{VF(0,dt)}:{VF(0,dt)+3}], v[{160+4*qt}:{163+4*qt}], 0")
        for kt in range(4):
            u = 16 + t*4 + kt
            slot = u % R
            if t == 0: softmax_tile(kt)
            A(f"s_waitcnt vmcnt({vm_after(u)})")
            for kc in range(2):
                for dt in range(2):
                    A(f"ds_read_b64_tr_b16 a[{VF(kc,dt)}:{VF(kc,dt)+1}], v{12+dt} offset:{slot*4096 + kc*2048}")
                    A(f"ds_read_b64_tr_b16 a[{VF(kc,dt)+2}:{VF(kc,dt)+3}], v{12+dt} offset:{slot*4096 + kc*2048 + 1024}")
            for kc in range(2):
                for dt in range(2):
                    A(f"s_waitcnt lgkmcnt({6 - 2*(kc*2+dt)})")
                    if kc == 1 and dt == 1 and u + R < NU: issue(u + R)
                    for qt in range(2):
                        o = O(dt, qt); p = S(kt, qt) + 4*kc
                        A(f"v_mfma_f32_32x32x16_bf16 a[{o}:{o+15}], a[{VF(kc,dt)}:{VF(kc,dt)+3}], v[{p}:{p+3}], a[{o}:{o+15}]")
        if t == 0:
            for qt in range(2):
                A(f"v_mov_b32 v30, v{28+qt}")
                A("s_nop 1")
                A(f"v_permlane32_swap_b32 v30, v{28+qt}")
                A("s_nop 1")
                A(f"v_add_f32 v{173+2*qt}, v{28+qt}, v30")
        else:
            A("s_nop 7")
        A("s_nop 3")
        A("s_barrier")
        if t == 0:
            for qt in range(2):
                A(f"ds_write_b64 v18, v[{172+2*qt}:{173+2*qt}] offset:{qt*512}")
        for i in range(16):
            A(f"ds_write_b128 v17, a[{4*i}:{4*i+3}] offset:{i*1024}")
        A("s_waitcnt lgkmcnt(0)")
        A("s_barrier")
    A("s_endpgm")

    LB("L_helper")
    A("v_lshlrev_b32 v3, 4, v0")
    for k in range(2):
        for n in range(4):
            A(f"s_lshl_b32 s74, s61, 13")
            A(f"s_add_u32 m0, s74, {RED + k*4096 + n*1024}")
            A("s_lshr_b32 s75, s61, 1"); A("s_lshl_b32 s75, s75, 14")
            A("s_and_b32 s76, s61, 1"); A("s_lshl_b32 s76, s76, 8")
            A("s_add_u32 s75, s75, s76")
            A(f"s_add_u32 s75, s75, {k*128 + n*4096}")
            A(f"buffer_load_dwordx4 v{1 + (n&1)}, s[36:39], s75 offen lds")
    A("s_lshl_b32 s74, s61, 10")
    A(f"s_add_u32 m0, s74, {TREEK}")
    A("s_nop 0")
    A("buffer_load_dwordx4 v3, s[40:43], s74 offen lds")
    A(f"s_add_u32 m0, s74, {TREEV}")
    A("s_nop 0")
    A("buffer_load_dwordx4 v3, s[44:47], s74 offen lds")
    FLAGS = 64 << 20
    A("s_lshl_b32 s78, s2, 2"); A("s_add_u32 s78, s78, s61")
    A("s_lshl_b32 s79, s78, 9"); A(f"s_add_u32 s79, s79, {FLAGS}")
    A("s_lshl_b32 s80, s78, 15")
    A("v_lshlrev_b32 v4, 7, v0")
    A("v_mov_b32 v5, 0")
    A("s_mov_b64 exec, 15")
    A("buffer_store_dword v5, v4, s[56:59], s79 offen sc1")
    A("s_mov_b64 exec, -1")
    A(f"s_mov_b32 s77, {f32hex(CEXP)}")
    A("s_and_b32 s74, s61, 1"); A("s_lshl_b32 s74, s74, 9"); A(f"s_add_u32 s74, s74, {STATS}")
    A("v_lshlrev_b32 v6, 3, v0")
    A("v_add_u32 v7, s74, v6")
    A("s_lshl_b32 s74, s61, 12"); A(f"s_add_u32 s74, s74, {RED}")
    A("v_add_u32 v8, s74, v3")
    A("v_mov_b32 v9, 0")
    A("v_mov_b32 v10, 1")
    A("s_lshl_b32 s81, s63, 2")
    A("s_waitcnt vmcnt(0)")
    A("s_barrier")
    A("s_cmp_lg_u32 s61, 0")
    A("s_cbranch_scc1 L_h_noatomic")
    A("s_mov_b64 exec, 1")
    A("buffer_atomic_add v10, v9, s[52:55], s81 offen")
    A("s_mov_b64 exec, -1")
    LB("L_h_noatomic")
    T = 32; RR = 96
    def poll(tag, srd_, soff, val):
        A(f"s_mov_b32 s82, {spin_limit}")
        LB(f"L_poll_{tag}")
        A(f"buffer_load_dword v11, v9, s[{srd_}:{srd_+3}], {soff} offen sc1")
        A("s_waitcnt vmcnt(0)")
        A("v_readfirstlane_b32 s83, v11")
        A("s_sub_u32 s82, s82, 1")
        A("s_cmp_eq_u32 s82, 0")
        A(f"s_cbranch_scc1 L_polldone_{tag}")
        A(f"s_cmp_eq_u32 s83, {val}")
        A(f"s_cbranch_scc1 L_polldone_{tag}")
        A("s_sleep 4")
        A(f"s_branch L_poll_{tag}")
        LB(f"L_polldone_{tag}")
    for t in range(4):
        A("s_barrier")
        A("s_barrier")
        if t == 0:
            for w in range(4): A(f"ds_read_b64 v[{16+2*w}:{17+2*w}], v7 offset:{w*1024}")
        for w in range(4):
            for i in range(4):
                A(f"ds_read_b128 v[{T+16*w+4*i}:{T+16*w+4*i+3}], v8 offset:{w*16384 + i*1024}")
        if t == 0:
            A("s_waitcnt lgkmcnt(15)")
            A("v_max3_f32 v4, v16, v18, v20")
            A("v_max_f32 v4, v4, v22")
            for w in range(4):
                A(f"v_sub_f32 v{12+w}, v{16+2*w}, v4")
            for w in range(4):
                A(f"v_mul_f32 v{12+w}, s77, v{12+w}")
            for w in range(4):
                A(f"v_exp_f32 v{12+w}, v{12+w}")
            A("s_nop 0")
            A("v_mul_f32 v5, v12, v17")
            for w in range(1, 4):
                A(f"v_fma_f32 v5, v{12+w}, v{17+2*w}, v5")
        for w in range(4):
            A(f"s_waitcnt lgkmcnt({12 - 4*w})")
            for i in range(16):
                if w == 0: A(f"v_mul_f32 v{RR+i}, v12, v{T+i}")
                else: A(f"v_fma_f32 v{RR+i}, v{12+w}, v{T+16*w+i}, v{RR+i}")
        if t < 3:
            if t == 0: poll("rdy", 52, "s81", 4)
            A(f"s_lshr_b32 s74, s{66+t}, 7")
            A("s_add_u32 s74, s74, s81")
            A("s_lshl_b32 s74, s74, 2"); A("s_add_u32 s74, s74, s61")
            A("s_lshl_b32 s75, s74, 15"); A(f"s_add_u32 s75, s75, {t*8192}")
            A("s_add_u32 s76, s75, 4096")
            for k in range(4):
                A(f"buffer_store_dwordx4 v[{RR+4*k}:{RR+4*k+3}], v3, s[56:59], s75 offen offset:{k*1024} sc1")
            A("buffer_store_dwordx2 v[4:5], v6, s[56:59], s76 offen sc1")
            A("s_lshl_b32 s75, s74, 9"); A(f"s_add_u32 s75, s75, {FLAGS + t*128}")
            A("s_waitcnt vmcnt(0)")
            A("s_mov_b64 exec, 1")
            A("buffer_store_dword v10, v9, s[56:59], s75 offen sc1")
            A("s_mov_b64 exec, -1")
            if t == 2:
                for k in range(3):
                    A(f"s_add_u32 s74, s79, {k*128}")
                    poll(f"m{k}", 56, "s74", 1)
                    A(f"s_add_u32 s75, s80, {k*8192}")
                    A("s_add_u32 s76, s75, 4096")
                    for i in range(4):
                        A(f"buffer_load_dwordx4 v[{112+16*k+4*i}:{112+16*k+4*i+3}], v3, s[56:59], s75 offen offset:{i*1024} sc1")
                    A(f"buffer_load_dwordx2 v[{160+2*k}:{161+2*k}], v6, s[56:59], s76 offen sc1")
                A("s_waitcnt vmcnt(0)")
                A("v_max3_f32 v16, v4, v160, v162")
                A("v_max_f32 v16, v16, v164")
                A("v_sub_f32 v17, v4, v16")
                for k in range(3): A(f"v_sub_f32 v{18+k}, v{160+2*k}, v16")
                for k in range(4): A(f"v_mul_f32 v{17+k}, s77, v{17+k}")
                for k in range(4): A(f"v_exp_f32 v{17+k}, v{17+k}")
                A("s_nop 0")
                A("v_mul_f32 v21, v17, v5")
                for k in range(3): A(f"v_fma_f32 v21, v{18+k}, v{161+2*k}, v21")
                A("v_rcp_f32 v21, v21")
                A("s_nop 0")
                for k in range(4): A(f"v_mul_f32 v{17+k}, v{17+k}, v21")
                for i in range(16):
                    A(f"v_mul_f32 v{112+i}, v18, v{112+i}")
                    A(f"v_fma_f32 v{112+i}, v19, v{128+i}, v{112+i}")
                    A(f"v_fma_f32 v{112+i}, v20, v{144+i}, v{112+i}")
                A("v_and_b32 v22, 31, v0"); A("v_lshlrev_b32 v22, 9, v22")
                A("v_lshrrev_b32 v23, 5, v0"); A("v_lshl_add_u32 v22, v23, 3, v22")
                A("s_and_b32 s74, s61, 1"); A("s_lshl_b32 s74, s74, 14")
                A("s_lshr_b32 s75, s61, 1"); A("s_lshl_b32 s75, s75, 6")
                A("s_add_u32 s74, s74, s75")
                A("s_lshl_b32 s75, s62, 7")
                A("s_add_u32 s84, s74, s75")
        else:
            for i in range(16):
                A(f"v_fma_f32 v{RR+i}, v17, v{RR+i}, v{112+i}")
            for g in range(4):
                A(f"v_cvt_pk_bf16_f32 v{RR+4*g}, v{RR+4*g}, v{RR+4*g+1}")
                A(f"v_cvt_pk_bf16_f32 v{RR+4*g+1}, v{RR+4*g+2}, v{RR+4*g+3}")
            for g in range(4):
                A(f"buffer_store_dwordx2 v[{RR+4*g}:{RR+4*g+1}], v22, s[48:51], s84 offen offset:{g*16}")
    LB("L_end")
    A("s_endpgm")
    L.append('.section .rodata,"a"')
    L.append(".p2align 6")
    L.append(f".amdhsa_kernel {KN}_kernel")
    L.append("  .amdhsa_next_free_vgpr 256\n  .amdhsa_next_free_sgpr 96\n  .amdhsa_accum_offset 176\n  .amdhsa_group_segment_fixed_size 0\n  .amdhsa_kernarg_size 72\n  .amdhsa_user_sgpr_count 2\n  .amdhsa_user_sgpr_kernarg_segment_ptr 1\n  .amdhsa_system_sgpr_workgroup_id_x 1")
    L.append(".end_amdhsa_kernel")
    return "\n".join(L) + "\n"

if __name__ == "__main__":
    out = sys.argv[1] if len(sys.argv) > 1 else "cdna_kernels/" + KN + ".s"
    open(out, "w").write(gen())
```
